```python
import torch

def _softmax(x, axis=-1):
    return torch.softmax(x, dim=axis)
def _gelu(x):
    return torch.nn.functional.gelu(x, approximate="tanh")
def _silu(x):
    return torch.nn.functional.silu(x)
def _sigmoid(x):
    return torch.sigmoid(x)
def _layernorm(x, axis=-1, eps=1e-5):
    m = x.mean(dim=axis, keepdim=True)
    v = x.var(dim=axis, keepdim=True, unbiased=False)
    return (x - m) / torch.sqrt(v + eps)
def _scatter_add(tgt, idx, src, axis=0):
    return tgt.clone().index_add_(axis, idx, src)
def _segment_sum(src, seg, n):
    out = torch.zeros((n,) + src.shape[1:], dtype=src.dtype)
    return out.index_add_(0, seg, src)
def _pad(x, pw):
    flat = tuple(v for pair in reversed(pw) for v in pair)
    return torch.nn.functional.pad(x, flat)

kernel_name = 'interleave_layers__softmax_full_mha__mixer_channel_mlp__prompt'

def setup_inputs():

    _w = (lambda a: (lambda t: t.to(torch.bfloat16) if t.is_floating_point() else t)(torch.as_tensor(a)))
    def _A_setup():
        B, S, D = 1, 2048, 512
        return {
            "x": _w((lambda *s: torch.randn(*s, dtype=torch.bfloat16) * 0.05)(B, S, D)),
            "wqkv": _w((lambda *s: torch.randn(*s, dtype=torch.bfloat16) * 0.05)(D, 3 * D)),
            "wo": _w((lambda *s: torch.randn(*s, dtype=torch.bfloat16) * 0.05)(D, D)),
        }
    _A_in = _A_setup()

    def _B_setup():
        B, S, D, F = 1, 2048, 512, 1376
        return {
            "x": _w((lambda *s: torch.randn(*s, dtype=torch.bfloat16) * 0.05)(B, S, D)),
            "w1": _w((lambda *s: torch.randn(*s, dtype=torch.bfloat16) * 1.6)(D, F) * (D ** -0.5)),
            "b1": _w((lambda *s: torch.randn(*s, dtype=torch.bfloat16) * 0.4)(F)),
            "w2": _w((lambda *s: torch.randn(*s, dtype=torch.bfloat16) * 0.2)(F, D) * (F ** -0.5)),
            "b2": _w((lambda *s: torch.randn(*s, dtype=torch.bfloat16) * 0.2)(D)),
        }
    _B_in = _B_setup()

    return {
        "A_x": _A_in["x"],
        "A_wqkv": _A_in["wqkv"],
        "A_wo": _A_in["wo"],
        "B_x": _B_in["x"],
        "B_w1": _B_in["w1"],
        "B_b1": _B_in["b1"],
        "B_w2": _B_in["w2"],
        "B_b2": _B_in["b2"],
    }

def reference(A_x, A_wqkv, A_wo, B_x, B_w1, B_b1, B_w2, B_b2):
    def _A_ref(x, wqkv, wo):
        B, S, D = x.shape
        H = 32; Dh = D // H
        qkv = (lambda x, *d: x.permute(*d))((x @ wqkv).reshape(B, S, 3, H, Dh), 2, 0, 3, 1, 4)
        q, k, v = qkv[0], qkv[1], qkv[2]
        scale = Dh ** -0.5
        scores = torch.einsum("bhqd,bhkd->bhqk", q, k) * scale
        p = _softmax(scores, axis=-1)
        o = torch.einsum("bhqk,bhkd->bhqd", p, v)
        return (lambda x, *d: x.permute(*d))(o, 0, 2, 1, 3).reshape(B, S, D) @ wo

    def _B_ref(x, w1, b1, w2, b2):
        y = _layernorm(x, axis=-1)
        h = _gelu(torch.einsum("bsd,df->bsf", y, w1) + b1)
        return torch.einsum("bsf,fd->bsd", h, w2) + b2

    x = A_x
    x = x + _A_ref(_layernorm(x, axis=-1), A_wqkv, A_wo)
    x = x + _B_ref(_layernorm(x, axis=-1), B_w1, B_b1, B_w2, B_b2)
    x = x + _A_ref(_layernorm(x, axis=-1), A_wqkv, A_wo)
    x = x + _B_ref(_layernorm(x, axis=-1), B_w1, B_b1, B_w2, B_b2)
    return x
```

```python
import re

_REG = re.compile(r'^(-|abs\()?([vas])(?:\[(\d+):(\d+)\]|(\d+))\)?$')
TRANS = ('v_exp_f32', 'v_rcp_f32', 'v_rsq_f32', 'v_log_f32', 'v_sqrt_f32')


def regs_of(tok):
    tok = tok.strip()
    if tok in ('vcc', 'exec', 'm0', 'scc'):
        return {(tok, 0)}
    m = _REG.match(tok)
    if not m:
        return set()
    k = m.group(2)
    if m.group(3) is not None:
        return {(k, i) for i in range(int(m.group(3)), int(m.group(4)) + 1)}
    return {(k, int(m.group(5)))}


class Ins:
    __slots__ = ('text', 'op', 'cls', 'w', 'r', 'passes', 'A', 'B', 'C', 'states', 'wide_store', 'lds_dma')

    def __init__(self, text):
        self.text = text
        self.w, self.r = set(), set()
        self.A, self.B, self.C = set(), set(), set()
        self.passes = 0
        self.states = 1
        self.wide_store = False
        self.lds_dma = False
        t = text.split(';')[0].strip()
        if t.endswith(':') or t.startswith('.') or not t:
            self.op, self.cls, self.states = t, 'label', 0
            return
        parts = t.split(None, 1)
        op = self.op = parts[0]
        rest = parts[1] if len(parts) > 1 else ''
        ops = [o.strip() for o in rest.split(',')]
        if ops:
            last = ops[-1].split()
            mods = last[1:]
            ops[-1] = last[0] if last else ''
        else:
            mods = []
        R = [regs_of(o) for o in ops]
        if op.startswith('v_mfma') or op.startswith('v_smfmac'):
            self.cls = 'mfma'
            self.passes = 8 if '32x32' in op else 4
            self.w = R[0]
            self.A, self.B = R[1], R[2]
            if op.startswith('v_smfmac'):
                self.C = R[0]
                self.B = self.B | R[3]
            else:
                self.C = R[3]
            self.r = self.A | self.B | self.C
        elif op.startswith('v_'):
            base = op.replace('_e32', '').replace('_e64', '')
            self.cls = 'trans' if base in TRANS else 'valu'
            if base.startswith('v_dot2'):
                self.cls = 'dot'
                self.C = R[3]
                self.A, self.B = R[1], R[2]
            if base.startswith('v_permlane') and 'swap' in base:
                self.w = R[0] | R[1]
                self.r = R[0] | R[1]
            else:
                self.w = R[0]
                for x in R[1:]:
                    self.r |= x
                if base.startswith(('v_fmac', 'v_pk_fmac')) or 'UNUSED_PRESERVE' in t:
                    self.r |= R[0]
                if base.startswith(('v_add_co', 'v_addc_co', 'v_sub_co')):
                    self.w |= R[1]
        elif op.startswith(('buffer_', 'global_')):
            self.cls = 'vmem'
            if 'lds' in mods:
                self.lds_dma = True
                for x in R:
                    self.r |= x
                self.r |= {('m0', 0)}
            elif 'load' in op:
                self.w = R[0]
                for x in R[1:]:
                    self.r |= x
            else:
                for x in R:
                    self.r |= x
                if 'x4' in op or 'x3' in op:
                    self.wide_store = True
                    self.A = R[0] if op.startswith('buffer_') else R[1]
        elif op.startswith('ds_'):
            self.cls = 'ds'
            if 'read' in op or 'permute' in op or 'swizzle' in op:
                self.w = R[0]
                for x in R[1:]:
                    self.r |= x
            else:
                for x in R:
                    self.r |= x
        elif op.startswith('s_'):
            self.cls = 'salu'
            if op == 's_nop':
                self.states = int(ops[0], 0) + 1
            elif op.startswith(('s_load', 's_buffer_load', 's_memtime', 's_memrealtime')):
                self.cls = 'smem'
                self.w = R[0]
                for x in R[1:]:
                    self.r |= x
            elif op.startswith(('s_cmp', 's_cbranch', 's_branch', 's_waitcnt', 's_barrier', 's_endpgm',
                                's_setprio', 's_sleep', 's_bitcmp')):
                for x in R:
                    self.r |= x
            else:
                self.w = R[0]
                for x in R[1:]:
                    self.r |= x
                if 'saveexec' in op:
                    self.w |= {('exec', 0)}
        else:
            raise ValueError('unknown instruction: ' + text)


def _vg(s):
    return {x for x in s if x[0] in 'va' and x[0] != 'vcc'}


def _sg(s):
    return {x for x in s if x[0] in ('s', 'vcc')}


def need(p, c):
    n = 0
    valu_p = p.cls in ('valu', 'trans', 'dot')
    valu_c = c.cls in ('valu', 'trans', 'dot')
    if valu_p:
        pw = _vg(p.w)
        if c.cls == 'mfma' and pw & c.r:
            n = max(n, 3 if p.cls == 'dot' else 2)
        if pw & c.r:
            if p.cls == 'trans' and c.cls in ('valu', 'dot'):
                n = max(n, 1)
            if c.op.startswith('v_permlane') or '_dpp' in c.op or 'row_' in c.text or 'quad_perm' in c.text:
                n = max(n, 2)
            if c.op.startswith(('v_readlane', 'v_readfirstlane')):
                n = max(n, 1)
            if 'sdwa' in p.op and valu_c:
                n = max(n, 1)
        if p.cls == 'dot' and pw & (c.r | c.w):
            if not (c.cls == 'dot' and c.op == p.op and not (pw & (c.A | c.B))):
                n = max(n, 3)
        ps = _sg(p.w)
        if ps & c.r:
            if valu_c:
                n = max(n, 2)
            if c.cls == 'vmem':
                n = max(n, 5)
            if c.op.startswith(('v_readlane', 'v_writelane')):
                n = max(n, 4)
            if c.cls in ('salu', 'smem'):
                n = max(n, 1)
    if p.cls == 'mfma':
        big = {4: 8, 8: 12}[p.passes]
        if c.cls == 'mfma':
            if p.w & (c.A | c.B):
                n = max(n, big)
            if p.w & c.C and not (p.w == c.C and p.passes == c.passes):
                n = max(n, p.passes + 2)
            if p.w & c.w and not (p.w == c.w and p.passes == c.passes):
                n = max(n, p.passes + 2)
        elif c.cls in ('valu', 'trans', 'dot', 'vmem', 'ds'):
            if p.w & (c.r | c.w):
                n = max(n, big)
            if valu_c and _vg(p.C) & c.w:
                n = max(n, p.passes - 1)
    if p.wide_store and p.A & c.w:
        n = max(n, 2)
    if p.cls == 'salu' and ('m0', 0) in p.w and c.lds_dma:
        n = max(n, 1)
    return n


class Asm:
    def __init__(self):
        self.ins = []
        self.nvm = 0
        self.nds = 0
        self.nops_added = 0

    def raw(self, text):
        self.ins.append(Ins(text))

    def label(self, name):
        self.ins.append(Ins(name + ':'))

    def I(self, text):
        c = Ins(text)
        dist, pad = 0, 0
        for p in reversed(self.ins):
            if dist >= 14:
                break
            if p.cls != 'label':
                pad = max(pad, need(p, c) - dist)
            dist += p.states
        if pad > 0:
            self.ins.append(Ins(f's_nop {pad - 1}'))
            self.nops_added += pad
        self.ins.append(c)
        if c.cls == 'vmem':
            self.nvm += 1
            return self.nvm - 1
        if c.cls == 'ds':
            self.nds += 1
            return self.nds - 1
        return None

    def M(self, text):
        for line in text.strip().split('\n'):
            line = line.strip()
            if line and not line.startswith(';'):
                if line.endswith(':'):
                    self.label(line[:-1])
                else:
                    self.I(line)

    def wait(self, vm=None, ds=None):
        parts = []
        if vm is not None:
            parts.append(f'vmcnt({min(63, self.nvm - 1 - vm)})')
        if ds is not None:
            parts.append(f'lgkmcnt({min(15, self.nds - 1 - ds)})')
        if parts:
            self.I('s_waitcnt ' + ' '.join(parts))

    def text(self):
        out = []
        for i in self.ins:
            out.append(i.text if i.cls == 'label' else '    ' + i.text)
        return '\n'.join(out) + '\n'


def vr(b, n=1):
    return f'v{b}' if n == 1 else f'v[{b}:{b + n - 1}]'


def ar(b, n=1):
    return f'a{b}' if n == 1 else f'a[{b}:{b + n - 1}]'


def sr(b, n=1):
    return f's{b}' if n == 1 else f's[{b}:{b + n - 1}]'
```

```python
import sys
import struct
from asmlib import Asm, vr, ar, sr

NAME = 'interleave_layers__softmax_full_mha__mixer_channel_mlp__prompt'

WS_CNT = 0
WS_WQKV = 0x10000
WS_W1 = WS_WQKV + 0x180000
WS_WO = WS_W1 + 0x180000
WS_W2 = WS_WO + 0x80000
WS_CQ = WS_W2 + 0x158000
WS_C1 = WS_CQ + 0x2000
LBASE = 0x600000
LS = 0x1280000
XIN, X1, QO, KO, VO, OO, HO, STIN, ST1 = (0, 0x200000, 0x400000, 0x600000, 0x800000, 0xA00000, 0xC00000,
                                          0x1200000, 0x1240000)
LDS_ONES = 131072
LDS_EXCH = 131072
LDS_STAT = 147456
LDS_TOTAL = 148480

S_WS = 4
S_W, S_RB, S_J, S_LB = 8, 9, 10, 13
S_AUX = 16
V_L16 = 1

EPS = 1e-5
LOG2E = 1.4426950408889634
QSCALE = 0.25 * LOG2E
GELU_A = 2.0 * 0.7978845608028654 * LOG2E
GELU_B = GELU_A * 0.044715


def f32(x):
    return '0x%08x' % struct.unpack('<I', struct.pack('<f', x))[0]


def srd(a, base, size):
    a.I(f's_mov_b32 {sr(base + 2)}, {size}')
    a.I(f's_mov_b32 {sr(base + 3)}, 0x20000')


def prologue(a, nwg, layer, end, aux=None):
    a.I(f's_cmp_ge_u32 s2, {nwg}')
    a.I(f's_cbranch_scc1 {end}')
    a.I(f's_load_dwordx2 {sr(S_WS, 2)}, s[0:1], 80')
    if aux:
        a.I(f's_load_dwordx2 {sr(S_AUX, 2)}, s[0:1], {aux[0]}')
    a.I('v_lshrrev_b32 v2, 6, v0')
    a.I('v_and_b32 v0, 63, v0')
    a.I(f'v_readfirstlane_b32 {sr(S_W)}, v2')
    a.I(f'v_lshlrev_b32 {vr(V_L16)}, 4, v0')
    a.I('s_and_b32 s20, s2, 7')
    a.I('s_lshr_b32 s21, s2, 6')
    a.I('s_lshl_b32 s20, s20, 2')
    a.I(f's_add_u32 {sr(S_RB)}, s20, s21')
    a.I('s_lshr_b32 s21, s2, 3')
    a.I(f's_and_b32 {sr(S_J)}, s21, 7')
    a.I(f's_mov_b32 {sr(S_LB)}, {LBASE + layer * LS}')
    srd(a, S_WS, 0x10000000)
    if aux:
        srd(a, S_AUX, aux[1])
    a.I('s_waitcnt lgkmcnt(0)')


def frag_loads(a, soff, regs, n, flags=''):
    last = None
    for i in range(n):
        if i and i % 4 == 0:
            a.I(f's_add_u32 {sr(soff)}, {sr(soff)}, 4096')
        last = a.I(f'buffer_load_dwordx4 {regs(i)}, {vr(V_L16)}, {sr(S_WS, 4)}, {sr(soff)} offen '
                   f'offset:{(i % 4) * 1024}{flags}')
    return last


def dma4(a, soff, n=4, flags=' sc1'):
    last = None
    for i in range(n):
        last = a.I(f'buffer_load_dwordx4 {vr(V_L16)}, {sr(S_WS, 4)}, {sr(soff)} offen offset:{i * 1024}{flags} lds')
    return last


def stage_up(a, kind, xoff, stoff):
    qkv = kind == 'qkv'
    V_T = 2
    V_OQ, V_OK = 10, 11
    V_SA, V_SV = 12, 13
    V_B = 16
    V_ACC = 32
    V_C = 56
    V_BI = 68
    V_P = 80
    V_ST = 92
    V_E = 96

    a.I(f's_lshl_b32 s20, {sr(S_J)}, 2')
    a.I(f's_add_u32 s20, s20, {sr(S_W)}')
    a.I('s_mul_i32 s21, s20, 49152')
    a.I(f's_add_u32 s21, s21, {WS_WQKV if qkv else WS_W1}')
    frag_loads(a, 21, lambda i: ar(4 * i, 4), 48)
    a.I(f'v_lshrrev_b32 {vr(V_T)}, 4, v0')
    a.I(f'v_and_b32 {vr(V_T + 1)}, 15, v0')
    a.I(f'v_lshlrev_b32 {vr(V_T + 2)}, 4, {vr(V_T)}')
    a.I('s_mul_i32 s22, s20, 192')
    a.I(f's_add_u32 s22, s22, {WS_CQ if qkv else WS_C1}')
    for t in range(2 if qkv else 3):
        a.I(f'buffer_load_dwordx4 {vr(V_C + 4 * t, 4)}, {vr(V_T + 2)}, {sr(S_WS, 4)}, s22 offen offset:{64 * t}')
    if qkv:
        a.I(f'v_lshlrev_b32 {vr(V_T + 3)}, 2, {vr(V_T + 1)}')
        a.I(f'buffer_load_dword {vr(V_C + 8)}, {vr(V_T + 3)}, {sr(S_WS, 4)}, s22 offen offset:128')
    else:
        a.I(f'v_lshlrev_b32 {vr(V_T + 3)}, 3, {vr(V_T)}')
        a.I('s_mul_i32 s23, s20, 96')
        for t in range(3):
            a.I(f'buffer_load_dwordx2 {vr(V_E + 2 * t, 2)}, {vr(V_T + 3)}, {sr(S_AUX, 4)}, s23 offen offset:{32 * t}')
    c_last = a.nvm - 1
    a.I(f'v_and_b32 {vr(V_T + 4)}, 1, {vr(V_T)}')
    a.I(f'v_lshlrev_b32 {vr(V_T + 4)}, 9, {vr(V_T + 4)}')
    a.I(f'v_lshrrev_b32 {vr(V_T + 5)}, 5, v0')
    a.I(f'v_lshl_add_u32 {vr(V_OQ)}, {vr(V_T + 5)}, 4, {vr(V_T + 1)}')
    a.I(f'v_lshl_add_u32 {vr(V_OQ)}, {vr(V_OQ)}, 4, {vr(V_T + 4)}')
    if qkv:
        a.I(f'v_lshrrev_b32 {vr(V_T + 6)}, 2, {vr(V_T + 1)}')
        a.I(f'v_lshlrev_b32 {vr(V_T + 6)}, 3, {vr(V_T + 6)}')
        a.I(f'v_lshl_add_u32 {vr(V_T + 6)}, {vr(V_T + 5)}, 2, {vr(V_T + 6)}')
        a.I(f'v_and_b32 {vr(V_T + 7)}, 3, v0')
        a.I(f'v_add_u32 {vr(V_T + 6)}, {vr(V_T + 6)}, {vr(V_T + 7)}')
        a.I(f'v_lshl_add_u32 {vr(V_OK)}, {vr(V_T + 6)}, 4, {vr(V_T + 4)}')
        a.I(f'v_lshlrev_b32 {vr(V_SV)}, 5, {vr(V_T)}')
        a.I(f'v_add_u32 {vr(V_SV)}, {LDS_STAT}, {vr(V_SV)}')
    a.I(f'v_lshlrev_b32 {vr(V_SA)}, 3, {vr(V_T + 1)}')
    a.I(f'v_add_u32 {vr(V_SA)}, {LDS_STAT}, {vr(V_SA)}')
    a.I(f'v_lshlrev_b32 {vr(V_T + 6)}, 11, {vr(V_T)}')
    a.I(f'v_lshl_add_u32 {vr(V_T + 6)}, {vr(V_T + 1)}, 3, {vr(V_T + 6)}')
    a.I(f's_lshl_b32 s24, {sr(S_RB)}, 13')
    a.I(f's_lshl_b32 s25, {sr(S_W)}, 7')
    a.I('s_add_u32 s24, s24, s25')
    a.I(f's_add_u32 s24, s24, {sr(S_LB)}')
    a.I(f's_add_u32 s24, s24, {stoff}')
    for i in range(4):
        st_last = a.I(f'buffer_load_dwordx2 {vr(V_B + 2 * i, 2)}, {vr(V_T + 6)}, {sr(S_WS, 4)}, s24 offen '
                      f'offset:{512 * i} sc1')
    a.I(f's_lshl_b32 s26, {sr(S_RB)}, 16')
    a.I(f's_lshl_b32 s27, {sr(S_W)}, 12')
    a.I('s_add_u32 s26, s26, s27')
    a.I(f's_add_u32 s26, s26, {sr(S_LB)}')
    a.I(f's_add_u32 s26, s26, {xoff}')
    chunk = []
    for u in range(4):
        a.I(f's_add_u32 m0, s27, {u * 16384}')
        if u:
            a.I('s_add_u32 s26, s26, 16384')
        chunk.append(dma4(a, 26))
    a.wait(vm=st_last)
    s1, s2, t0, t1 = V_B, V_B + 1, V_B + 2, V_B + 3
    for i in range(1, 4):
        a.I(f'v_add_f32 {vr(s1)}, {vr(s1)}, {vr(V_B + 2 * i)}')
        a.I(f'v_add_f32 {vr(s2)}, {vr(s2)}, {vr(V_B + 2 * i + 1)}')
    a.I(f'v_permlane32_swap_b32 {vr(s1)}, {vr(s2)}')
    a.I(f'v_add_f32 {vr(s1)}, {vr(s1)}, {vr(s2)}')
    a.I(f'v_mov_b32 {vr(s2)}, {vr(s1)}')
    a.I(f'v_permlane16_swap_b32 {vr(s1)}, {vr(s2)}')
    a.I(f'v_add_f32 {vr(s1)}, {vr(s1)}, {vr(s2)}')
    a.I(f'v_mov_b32 {vr(s2)}, {vr(s1)}')
    a.I(f'v_permlane32_swap_b32 {vr(s1)}, {vr(s2)}')
    a.I(f'v_mul_f32 {vr(s1)}, {f32(1 / 512)}, {vr(s1)}')
    a.I(f'v_mul_f32 {vr(s2)}, {f32(1 / 512)}, {vr(s2)}')
    a.I(f'v_fma_f32 {vr(s2)}, -{vr(s1)}, {vr(s1)}, {vr(s2)}')
    a.I(f'v_max_f32 {vr(s2)}, 0, {vr(s2)}')
    a.I(f'v_add_f32 {vr(t0)}, {f32(EPS)}, {vr(s2)}')
    a.I(f'v_rsq_f32 {vr(t0)}, {vr(t0)}')
    if not qkv:
        a.I(f'v_mul_f32 {vr(t1)}, {vr(t0)}, {vr(t0)}')
        a.I(f'v_mul_f32 {vr(t1)}, {vr(t1)}, {vr(s2)}')
        a.I(f'v_add_f32 {vr(t1)}, {f32(EPS)}, {vr(t1)}')
        a.I(f'v_rsq_f32 {vr(t1)}, {vr(t1)}')
        a.I(f'v_mul_f32 {vr(t0)}, {vr(t0)}, {vr(t1)}')
    a.I(f'v_mul_f32 {vr(t1)}, -{vr(s1)}, {vr(t0)}'.replace('v_mul_f32', 'v_mul_f32_e64'))
    a.I(f's_lshl_b32 s25, {sr(S_W)}, 7')
    a.I(f'v_add_u32 {vr(V_T + 6)}, s25, {vr(V_SA)}')
    a.I(f'ds_write_b64 {vr(V_T + 6)}, {vr(t0, 2)}')
    if not qkv:
        for t in range(3):
            for d in range(2):
                a.I(f'v_lshlrev_b32 {vr(V_BI + 4 * t + 2 * d)}, 16, {vr(V_E + 2 * t + d)}')
                a.I(f'v_and_b32 {vr(V_BI + 4 * t + 2 * d + 1)}, 0xffff0000, {vr(V_E + 2 * t + d)}')
    if qkv:
        a.I('s_lshl_b32 s28, s20, 16')
        a.I(f's_lshl_b32 s29, {sr(S_RB)}, 11')
        a.I('s_add_u32 s28, s28, s29')
        a.I(f's_add_u32 s28, s28, {sr(S_LB)}')
        a.I(f's_add_u32 s29, s28, {KO}')
        a.I(f's_add_u32 s30, s28, {VO}')
        a.I(f's_add_u32 s28, s28, {QO}')
    else:
        a.I(f's_mul_i32 s28, {sr(S_RB)}, {2 * 96 * 1024}')
        a.I('s_mul_i32 s29, s20, 3072')
        a.I('s_add_u32 s28, s28, s29')
        a.I(f's_add_u32 s28, s28, {sr(S_LB)}')
        a.I(f's_add_u32 s28, s28, {HO}')
        a.I(f's_mov_b32 s32, {f32(-GELU_B)}')
        a.I(f's_mov_b32 s33, {f32(-GELU_A)}')

    def epilogue(u):
        L = []
        acc = V_ACC + 12 * (u & 1)
        po = 2 * (u & 1)
        st = {}
        L.append(lambda: st.__setitem__('a', a.I(f'ds_read_b64 {vr(V_ST, 2)}, {vr(V_SA)} offset:{128 * u}')))
        if qkv:
            L.append(lambda: a.I(f'ds_read_b128 {vr(V_BI, 4)}, {vr(V_SV)} offset:{128 * u}'))
            L.append(lambda: st.__setitem__('a', a.I(f'ds_read_b128 {vr(V_BI + 4, 4)}, {vr(V_SV)} '
                                                      f'offset:{128 * u + 16}')))
        L.append(None)
        L.append(None)
        L.append(lambda: a.wait(ds=st['a']))
        E = lambda s: L.append(lambda: a.I(s))
        if qkv:
            E(f'v_mul_f32 {vr(V_ST + 2)}, {f32(QSCALE)}, {vr(V_ST)}')
            E(f'v_mul_f32 {vr(V_ST + 3)}, {f32(QSCALE)}, {vr(V_ST + 1)}')
            for t in range(2):
                r, nm = (V_ST + 2, V_ST + 3) if t == 0 else (V_ST, V_ST + 1)
                for c in range(4):
                    E(f'v_mul_f32 {vr(V_E + c)}, {vr(nm)}, {vr(V_C + 4 * t + c)}')
                for c in range(4):
                    E(f'v_fmac_f32 {vr(V_E + c)}, {vr(acc + 4 * t + c)}, {vr(r)}')
                for d in range(2):
                    E(f'v_cvt_pk_bf16_f32 {vr(V_P + 4 * t + po + d)}, {vr(V_E + 2 * d)}, {vr(V_E + 2 * d + 1)}')
            for c in range(4):
                E(f'v_mul_f32 {vr(V_E + c)}, {vr(V_BI + 2 * c + 1)}, {vr(V_C + 8)}')
            for c in range(4):
                E(f'v_fmac_f32 {vr(V_E + c)}, {vr(acc + 8 + c)}, {vr(V_BI + 2 * c)}')
            for d in range(2):
                E(f'v_cvt_pk_bf16_f32 {vr(V_P + 8 + po + d)}, {vr(V_E + 2 * d)}, {vr(V_E + 2 * d + 1)}')
        else:
            for t in range(3):
                x, y = V_E, V_E + 4
                for c in range(4):
                    E(f'v_fma_f32 {vr(x + c)}, {vr(V_C + 4 * t + c)}, {vr(V_ST + 1)}, {vr(V_BI + 4 * t + c)}')
                for c in range(4):
                    E(f'v_fmac_f32 {vr(x + c)}, {vr(acc + 4 * t + c)}, {vr(V_ST)}')
                for c in range(4):
                    E(f'v_mul_f32 {vr(y + c)}, {vr(x + c)}, {vr(x + c)}')
                for c in range(4):
                    E(f'v_fma_f32 {vr(y + c)}, {vr(y + c)}, s32, {vr(V_T)}')
                for c in range(4):
                    E(f'v_mul_f32 {vr(y + c)}, {vr(y + c)}, {vr(x + c)}')
                for c in range(4):
                    E(f'v_exp_f32 {vr(y + c)}, {vr(y + c)}')
                for c in range(4):
                    E(f'v_add_f32 {vr(y + c)}, 1.0, {vr(y + c)}')
                for c in range(4):
                    E(f'v_rcp_f32 {vr(y + c)}, {vr(y + c)}')
                for c in range(4):
                    E(f'v_mul_f32 {vr(x + c)}, {vr(x + c)}, {vr(y + c)}')
                for d in range(2):
                    E(f'v_cvt_pk_bf16_f32 {vr(V_P + 4 * t + po + d)}, {vr(x + 2 * d)}, {vr(x + 2 * d + 1)}')
        if u & 1:
            for t in range(2 if qkv else 3):
                for d in range(2):
                    E(f'v_permlane32_swap_b32 {vr(V_P + 4 * t + d)}, {vr(V_P + 4 * t + 2 + d)}')
            tt = u >> 1
            if qkv:
                E(f'buffer_store_dwordx4 {vr(V_P, 4)}, {vr(V_OQ)}, {sr(S_WS, 4)}, s28 offen offset:{1024 * tt} sc1')
                E(f'buffer_store_dwordx4 {vr(V_P + 4, 4)}, {vr(V_OK)}, {sr(S_WS, 4)}, s29 offen '
                  f'offset:{1024 * tt} sc1')
                E(f'buffer_store_dwordx4 {vr(V_P + 8, 4)}, {vr(V_L16)}, {sr(S_WS, 4)}, s30 offen '
                  f'offset:{1024 * tt} sc1')
            else:
                for t in range(3):
                    E(f'buffer_store_dwordx4 {vr(V_P + 4 * t, 4)}, {vr(V_OQ)}, {sr(S_WS, 4)}, s28 offen '
                      f'offset:{1024 * t} sc1')
                if tt == 0:
                    E(f's_add_u32 s28, s28, {96 * 1024}')
        return L

    if not qkv:
        a.I(f'v_mov_b32 {vr(V_T)}, s33')
    steps = [(u, ks) for u in range(4) for ks in range(16)]
    rd = {}

    def read(n):
        u, ks = steps[n]
        rd[n] = a.I(f'ds_read_b128 {vr(V_B + 4 * (n % 4), 4)}, {vr(V_L16)} offset:{u * 16384 + ks * 1024}')

    pend = []
    nread = 0
    for n, (u, ks) in enumerate(steps):
        if ks == 0:
            a.wait(vm=chunk[u])
            if u == 0:
                a.I('s_waitcnt lgkmcnt(0)')
            a.I('s_barrier')
            while nread < n + 3:
                read(nread)
                nread += 1
        if ks == 1 and u > 0:
            pend = epilogue(u - 1)
        a.wait(ds=rd[n])
        b = vr(V_B + 4 * (n % 4), 4)
        acc = V_ACC + 12 * (u & 1)
        per = -(-len(pend) // ((16 - ks) * 3)) if pend else 0
        for t in range(3):
            d = vr(acc + 4 * t, 4)
            w = ar(64 * t + 4 * ks, 4)
            x, y = (b, w) if (qkv and t == 2) else (w, b)
            a.I(f'v_mfma_f32_16x16x32_bf16 {d}, {x}, {y}, {d if ks else 0}')
            if t == 0 and nread < len(steps) and steps[nread][0] == u:
                read(nread)
                nread += 1
            for _ in range(per):
                if pend:
                    f = pend.pop(0)
                    if f:
                        f()
        if ks == 15:
            while pend:
                f = pend.pop(0)
                if f:
                    f()
    for f in epilogue(3):
        if f:
            f()


def stage_down(a, kind, final):
    proj = kind == 'proj'
    nk = 16 if proj else 43
    V_T = 2
    V_OX, V_BA, V_XA = 10, 11, 12
    V_B = 16
    V_ACC = 40
    V_R = 72
    V_B2 = 80
    wreg = (lambda i: ar(192 + 4 * i, 4)) if proj else (lambda i: vr(84 + 4 * i, 4))

    a.I(f's_and_b32 s20, {sr(S_W)}, 1')
    a.I(f's_lshr_b32 s21, {sr(S_W)}, 1')
    a.I(f's_lshl_b32 s22, {sr(S_J)}, 1')
    a.I('s_add_u32 s22, s22, s20')
    a.I(f's_mul_i32 s23, s22, {2 * nk * 1024}')
    a.I(f's_mul_i32 s24, s21, {nk * 1024}')
    a.I('s_add_u32 s23, s23, s24')
    a.I(f's_add_u32 s23, s23, {WS_WO if proj else WS_W2}')
    w_last = frag_loads(a, 23, wreg, nk)
    a.I(f'v_lshrrev_b32 {vr(V_T)}, 5, v0')
    a.I(f'v_bfe_u32 {vr(V_T + 1)}, v0, 4, 1')
    a.I(f'v_and_b32 {vr(V_T + 2)}, 15, v0')
    a.I(f'v_lshlrev_b32 {vr(V_OX)}, 14, {vr(V_T + 1)}')
    a.I(f'v_lshl_add_u32 {vr(V_OX)}, {vr(V_T)}, 8, {vr(V_OX)}')
    a.I(f'v_lshl_add_u32 {vr(V_OX)}, {vr(V_T + 2)}, 4, {vr(V_OX)}')
    a.I(f's_lshl_b32 s25, {sr(S_RB)}, 16')
    a.I('s_lshl_b32 s26, s21, 15')
    a.I('s_add_u32 s25, s25, s26')
    a.I('s_lshl_b32 s26, s22, 10')
    a.I('s_add_u32 s25, s25, s26')
    a.I(f's_add_u32 s25, s25, {sr(S_LB)}')
    a.I(f's_add_u32 s26, s25, {XIN if proj else X1}')
    for k in range(2):
        a.I(f'buffer_load_dwordx4 {vr(V_R + 4 * k, 4)}, {vr(V_OX)}, {sr(S_WS, 4)}, s26 offen offset:{512 * k} sc1')
    if not proj:
        a.I(f'v_lshlrev_b32 {vr(V_T + 3)}, 3, {vr(V_T)}')
        a.I('s_lshl_b32 s27, s22, 6')
        b2r = [V_B2, V_B2 + 2, V_T + 4, V_T + 6]
        for m in range(4):
            a.I(f'buffer_load_dwordx2 {vr(b2r[m], 2)}, {vr(V_T + 3)}, {sr(S_AUX, 4)}, s27 offen offset:{16 * m}')
    a.I('s_lshl_b32 s27, s21, 16')
    a.I(f'v_add_u32 {vr(V_BA)}, s27, {vr(V_L16)}')
    rows = 32 if proj else 96
    a.I(f's_lshl_b32 s27, {sr(S_RB)}, 1')
    a.I('s_add_u32 s27, s27, s20')
    a.I(f's_mul_i32 s27, s27, {rows * 1024}')
    a.I('s_add_u32 s27, s27, s24')
    a.I(f's_add_u32 s27, s27, {sr(S_LB)}')
    a.I(f's_add_u32 s27, s27, {OO if proj else HO}')
    a.I(f's_lshl_b32 s28, {sr(S_W)}, 15')
    nch = -(-nk // 4)
    chunk = {}

    def stage(c):
        a.I(f's_add_u32 m0, s28, {(c % 8) * 4096}')
        if c:
            a.I('s_add_u32 s27, s27, 4096')
        chunk[c] = dma4(a, 27, min(4, nk - 4 * c))

    for c in range(min(nch, 8)):
        stage(c)
    rd = {}

    def read(i):
        for t in range(2):
            rd[i] = a.I(f'ds_read_b128 {vr(V_B + 8 * (i % 3) + 4 * t, 4)}, {vr(V_BA)} '
                        f'offset:{t * 32768 + (i % 32) * 1024}')

    group = 4 if proj else 8
    nread = 0
    for i in range(nk):
        if i % group == 0:
            cl = min(nch - 1, (i + group - 1) // 4)
            a.wait(vm=chunk[cl])
            a.I('s_barrier')
            if not proj and i == 16:
                for c in range(8, nch):
                    stage(c)
            while nread < min(nk, i + 2):
                read(nread)
                nread += 1
        a.wait(ds=rd[i])
        for t in range(2):
            d = vr(V_ACC + 16 * t, 16)
            a.I(f'v_mfma_f32_32x32x16_bf16 {d}, {wreg(i)}, {vr(V_B + 8 * (i % 3) + 4 * t, 4)}, {d if i else 0}')
            if t == 0 and nread < nk and nread // group == i // group:
                read(nread)
                nread += 1
    a.I(f's_lshl_b32 s28, {sr(S_W)}, 12')
    a.I(f's_add_u32 s28, s28, {LDS_EXCH}')
    a.I(f'v_add_u32 {vr(V_XA)}, s28, {vr(V_L16)}')
    lab = f'L_{kind}{id(a) % 100000}_{len(a.ins)}'
    a.I('s_cmp_eq_u32 s21, 0')
    a.I('s_nop 7')
    a.I(f's_cbranch_scc1 {lab}_k0')
    for q in range(4):
        a.I(f'ds_write_b128 {vr(V_XA)}, {vr(V_ACC + 4 * q, 4)} offset:{1024 * q}')
    for q in range(16):
        a.I(f'v_mov_b32 {vr(V_ACC + q)}, {vr(V_ACC + 16 + q)}')
    a.I(f's_branch {lab}_x')
    a.label(f'{lab}_k0')
    for q in range(4):
        a.I(f'ds_write_b128 {vr(V_XA)}, {vr(V_ACC + 16 + 4 * q, 4)} offset:{1024 * q}')
    a.label(f'{lab}_x')
    a.I(f'v_xor_b32 {vr(V_XA)}, 8192, {vr(V_XA)}')
    a.I('s_waitcnt lgkmcnt(0)')
    a.I('s_barrier')
    for q in range(4):
        a.I(f'ds_read_b128 {vr(V_ACC + 16 + 4 * q, 4)}, {vr(V_XA)} offset:{1024 * q}')
    for k in range(8):
        a.I(f'v_lshlrev_b32 {vr(V_B + 2 * k)}, 16, {vr(V_R + k)}')
        a.I(f'v_and_b32 {vr(V_B + 2 * k + 1)}, 0xffff0000, {vr(V_R + k)}')
    for q in range(16):
        a.I(f'v_add_f32 {vr(V_ACC + q)}, {vr(V_ACC + q)}, {vr(V_B + q)}')
    if not proj:
        for m in range(4):
            for d in range(2):
                a.I(f'v_lshlrev_b32 {vr(V_B + 4 * m + 2 * d)}, 16, {vr(b2r[m] + d)}')
                a.I(f'v_and_b32 {vr(V_B + 4 * m + 2 * d + 1)}, 0xffff0000, {vr(b2r[m] + d)}')
        for q in range(16):
            a.I(f'v_add_f32 {vr(V_ACC + q)}, {vr(V_ACC + q)}, {vr(V_B + q)}')
    a.I('s_waitcnt lgkmcnt(0)')
    for q in range(16):
        a.I(f'v_add_f32 {vr(V_ACC + q)}, {vr(V_ACC + q)}, {vr(V_ACC + 16 + q)}')
    for k in range(8):
        a.I(f'v_cvt_pk_bf16_f32 {vr(V_R + k)}, {vr(V_ACC + 2 * k)}, {vr(V_ACC + 2 * k + 1)}')
    if final:
        a.I(f's_load_dwordx2 {sr(S_AUX, 2)}, s[0:1], 64')
        srd(a, S_AUX, 2048 * 512 * 2)
        for k in range(2):
            for d in range(2):
                a.I(f'v_permlane32_swap_b32 {vr(V_R + 4 * k + d)}, {vr(V_R + 4 * k + 2 + d)}')
        a.I(f'v_and_b32 {vr(V_T + 1)}, 31, v0')
        a.I(f'v_lshlrev_b32 {vr(V_T + 1)}, 10, {vr(V_T + 1)}')
        a.I(f'v_lshl_add_u32 {vr(V_T + 1)}, {vr(V_T)}, 4, {vr(V_T + 1)}')
        a.I(f's_lshl_b32 s26, {sr(S_RB)}, 16')
        a.I('s_lshl_b32 s27, s21, 15')
        a.I('s_add_u32 s26, s26, s27')
        a.I('s_lshl_b32 s27, s22, 6')
        a.I('s_add_u32 s26, s26, s27')
        a.I('s_waitcnt lgkmcnt(0)')
        for k in range(2):
            a.I(f'buffer_store_dwordx4 {vr(V_R + 4 * k, 4)}, {vr(V_T + 1)}, {sr(S_AUX, 4)}, s26 offen offset:{32 * k}')
        return
    a.I(f's_add_u32 s26, s25, {X1 if proj else LS + XIN}')
    for k in range(2):
        a.I(f'buffer_store_dwordx4 {vr(V_R + 4 * k, 4)}, {vr(V_OX)}, {sr(S_WS, 4)}, s26 offen offset:{512 * k} sc1')
    s1, s2 = V_B, V_B + 1
    a.I(f'v_add_f32 {vr(s1)}, {vr(V_ACC)}, {vr(V_ACC + 1)}')
    a.I(f'v_mul_f32 {vr(s2)}, {vr(V_ACC)}, {vr(V_ACC)}')
    a.I(f'v_fmac_f32 {vr(s2)}, {vr(V_ACC + 1)}, {vr(V_ACC + 1)}')
    for q in range(2, 16):
        a.I(f'v_add_f32 {vr(s1)}, {vr(s1)}, {vr(V_ACC + q)}')
        a.I(f'v_fmac_f32 {vr(s2)}, {vr(V_ACC + q)}, {vr(V_ACC + q)}')
    a.I(f'v_and_b32 {vr(V_T + 1)}, 31, v0')
    a.I(f'v_lshlrev_b32 {vr(V_T + 1)}, 3, {vr(V_T + 1)}')
    a.I(f'v_lshl_add_u32 {vr(V_T + 1)}, {vr(V_T)}, 2, {vr(V_T + 1)}')
    a.I(f'v_permlane32_swap_b32 {vr(s1)}, {vr(s2)}')
    a.I(f'v_add_f32 {vr(s1)}, {vr(s1)}, {vr(s2)}')
    a.I(f's_lshl_b32 s26, {sr(S_RB)}, 13')
    a.I('s_lshl_b32 s27, s22, 9')
    a.I('s_add_u32 s26, s26, s27')
    a.I('s_lshl_b32 s27, s21, 8')
    a.I('s_add_u32 s26, s26, s27')
    a.I(f's_add_u32 s26, s26, {sr(S_LB)}')
    a.I(f's_add_u32 s26, s26, {ST1 if proj else LS + STIN}')
    a.I(f'buffer_store_dword {vr(s1)}, {vr(V_T + 1)}, {sr(S_WS, 4)}, s26 offen sc1')


def stage_att(a, tag):
    V_T = 2
    V_IDX, V_VA, V_VS = 8, 9, 10
    V_Q = 12
    V_K = 20
    V_V = 24
    V_S = [32, 48]
    V_O = [64, 80]

    a.I(f's_lshl_b32 s20, {sr(S_RB)}, 16')
    a.I(f's_add_u32 s20, s20, {sr(S_LB)}')
    a.I(f's_lshl_b32 s21, {sr(S_J)}, 13')
    a.I(f's_lshl_b32 s22, {sr(S_W)}, 11')
    a.I('s_add_u32 s21, s21, s22')
    a.I('s_add_u32 s21, s21, s20')
    a.I(f's_add_u32 s21, s21, {QO}')
    for t in range(2):
        q_last = a.I(f'buffer_load_dwordx4 {vr(V_Q + 4 * t, 4)}, {vr(V_L16)}, {sr(S_WS, 4)}, s21 offen '
                     f'offset:{1024 * t} sc1')
    a.I(f's_and_b32 s22, {sr(S_W)}, 1')
    a.I('s_lshl_b32 s22, s22, 12')
    a.I(f's_lshr_b32 s23, {sr(S_W)}, 1')
    a.I('s_lshl_b32 s24, s23, 16')
    a.I('s_add_u32 s24, s24, s22')
    a.I(f's_mul_i32 s23, s23, {VO - KO}')
    a.I('s_add_u32 s23, s23, s22')
    a.I('s_add_u32 s23, s23, s20')
    a.I(f's_add_u32 s23, s23, {KO}')
    grp = {}

    def stage_ops(c):
        L = [lambda: a.I(f's_add_u32 m0, s24, {c * 8192}')]
        if c:
            L.append(lambda: a.I('s_add_u32 s23, s23, 8192'))
        for i in range(4):
            L.append(lambda i=i: grp.__setitem__(c, a.I(
                f'buffer_load_dwordx4 {vr(V_L16)}, {sr(S_WS, 4)}, s23 offen offset:{i * 1024} sc1 lds')))
        return L

    for c in range(2):
        for f in stage_ops(c):
            f()
    a.I(f'v_mov_b32 {vr(V_IDX)}, 0xdddddddd')
    for i in range(4):
        a.I(f'v_mov_b32 {vr(V_T + 2 + i)}, 0x3f803f80')
    a.I(f's_lshl_b32 s25, {sr(S_W)}, 10')
    a.I(f's_add_u32 s25, s25, {LDS_ONES}')
    a.I(f'v_add_u32 {vr(V_T)}, s25, {vr(V_L16)}')
    a.I(f'ds_write_b128 {vr(V_T)}, {vr(V_T + 2, 4)}')
    a.I(f'v_and_b32 {vr(V_T)}, 15, v0')
    a.I(f'v_lshrrev_b32 {vr(V_T + 1)}, 5, v0')
    a.I(f'v_lshlrev_b32 {vr(V_T + 1)}, 8, {vr(V_T + 1)}')
    a.I(f'v_lshl_add_u32 {vr(V_T)}, {vr(V_T)}, 4, {vr(V_T + 1)}')
    a.I(f'v_add_u32 {vr(V_T)}, 65536, {vr(V_T)}')
    a.I(f'v_add_u32 {vr(V_T + 1)}, 4, v0')
    a.I(f'v_and_b32 {vr(V_T + 1)}, 8, {vr(V_T + 1)}')
    a.I(f'v_lshlrev_b32 {vr(V_T + 1)}, 3, {vr(V_T + 1)}')
    a.I(f'v_add_u32 {vr(V_T + 1)}, {LDS_ONES}, {vr(V_T + 1)}')
    a.I(f'v_and_b32 {vr(V_VS)}, 16, v0')
    a.I(f'v_cmp_eq_u32 vcc, 0, {vr(V_VS)}')
    a.I(f'v_cndmask_b32 {vr(V_VA)}, {vr(V_T + 1)}, {vr(V_T)}, vcc')
    a.I(f'v_mov_b32 {vr(V_T)}, 4096')
    a.I(f'v_cndmask_b32 {vr(V_VS)}, 0, {vr(V_T)}, vcc')
    for t in range(2):
        for i in range(16):
            a.I(f'v_mov_b32 {vr(V_O[t] + i)}, 0')

    def rdk(kt):
        return a.I(f'ds_read_b128 {vr(V_K, 4)}, {vr(V_L16)} offset:{kt * 1024}')

    def rdv(kt, h):
        return a.I(f'ds_read_b128 {vr(V_V + 4 * h, 4)}, {vr(V_VA)} offset:{(kt % 4) * 1024 + 512 * h}')

    def qk(u):
        s = V_S[u % 2]
        a.I(f'v_mfma_f32_32x32x16_bf16 {vr(s, 16)}, {vr(V_K, 4)}, {vr(V_Q + 4 * (u % 2), 4)}, 0')

    def pv(u, h):
        s = V_S[u % 2]
        a.I(f'v_smfmac_f32_32x32x32_bf16 {vr(V_O[u % 2], 16)}, {vr(V_V + 4 * h, 4)}, {vr(s + 8 * h, 8)}, {vr(V_IDX)}')

    a.wait(vm=grp[0])
    a.I('s_waitcnt lgkmcnt(0)')
    a.I('s_barrier')
    k_rd = rdk(0)
    v_rd = [rdv(0, 0), rdv(0, 1)]
    a.wait(ds=k_rd)
    qk(0)
    extra = []
    for c in range(2, 8):
        extra += stage_ops(c)
    NU = 128
    for u in range(NU):
        kt, q = u // 2, u % 2
        s = V_S[q]
        e = [f'v_exp_f32 {vr(s + i)}, {vr(s + i)}' for i in range(16)]

        def filler(n):
            for _ in range(n):
                if extra:
                    extra.pop(0)()

        a.I(e[0])
        a.I(e[1])
        if u > 0:
            if q == 1:
                a.wait(ds=v_rd[1])
            pv(u - 1, 1)
            if q == 0:
                v_rd[1] = rdv(kt, 1)
            else:
                filler(1)
        for i in range(2, 6):
            a.I(e[i])
        if u + 1 < NU:
            if q == 1:
                a.wait(ds=k_rd)
            qk(u + 1)
            if q == 0 and kt + 1 < 64:
                if (kt + 1) in (8, 16):
                    a.wait(vm=grp[1 if kt + 1 == 8 else 7])
                    a.I('s_barrier')
                k_rd = rdk(kt + 1)
            else:
                filler(1)
        for i in range(6, 10):
            a.I(e[i])
        if q == 0:
            a.wait(ds=v_rd[0])
        pv(u, 0)
        if q == 1 and kt + 1 < 64:
            if (kt + 1) % 4 == 0:
                a.I(f'v_add_u32 {vr(V_VA)}, {vr(V_VS)}, {vr(V_VA)}')
            v_rd[0] = rdv(kt + 1, 0)
        else:
            filler(1)
        for i in range(10, 16):
            a.I(e[i])
    assert not extra
    pv(NU - 1, 1)
    a.I(f's_mov_b32 s26, {f32(2.0 ** -40)}')
    a.I(f's_mov_b32 s27, {f32(2.0 ** 40)}')
    a.I(f'v_cmp_le_f32 s[28:29], s26, {vr(V_O[0] + 8)}')
    a.I(f'v_cmp_ge_f32 s[30:31], s27, {vr(V_O[0] + 8)}')
    a.I(f'v_cmp_le_f32 s[32:33], s26, {vr(V_O[1] + 8)}')
    a.I(f'v_cmp_ge_f32 s[34:35], s27, {vr(V_O[1] + 8)}')
    a.I('s_and_b64 s[28:29], s[28:29], s[30:31]')
    a.I('s_and_b64 s[32:33], s[32:33], s[34:35]')
    a.I('s_and_b64 s[28:29], s[28:29], s[32:33]')
    a.I('s_cmp_eq_u64 s[28:29], -1')
    a.I(f's_cbranch_scc0 L_slow_{tag}')
    a.label(f'L_fin_{tag}')
    a.I(f's_lshl_b32 s21, {sr(S_J)}, 18')
    a.I(f's_lshl_b32 s22, {sr(S_W)}, 16')
    a.I('s_add_u32 s21, s21, s22')
    a.I(f's_lshl_b32 s22, {sr(S_RB)}, 10')
    a.I('s_add_u32 s21, s21, s22')
    a.I(f's_add_u32 s21, s21, {sr(S_LB)}')
    a.I(f's_add_u32 s21, s21, {OO}')
    for t in range(2):
        o = V_O[t]
        a.I(f'v_rcp_f32 {vr(o + 8)}, {vr(o + 8)}')
        for i in range(8):
            a.I(f'v_mul_f32 {vr(o + i)}, {vr(o + i)}, {vr(o + 8)}')
        for i in range(4):
            a.I(f'v_cvt_pk_bf16_f32 {vr(o + 12 + i)}, {vr(o + 2 * i)}, {vr(o + 2 * i + 1)}')
        if t:
            a.I('s_add_u32 s21, s21, 32768')
        a.I(f'buffer_store_dwordx4 {vr(o + 12, 4)}, {vr(V_L16)}, {sr(S_WS, 4)}, s21 offen sc1')

    def slow():
        V_M, V_KA = V_T, V_T + 1
        C = V_S[1]
        S = V_S[0]
        a.label(f'L_slow_{tag}')
        for t in range(2):
            a.I(f'v_mov_b32 {vr(V_M)}, 0xff800000')
            a.I(f'v_mov_b32 {vr(V_KA)}, {vr(V_L16)}')
            a.I('s_mov_b32 s26, 64')
            a.label(f'L_smax_{tag}_{t}')
            a.I(f'ds_read_b128 {vr(V_K, 4)}, {vr(V_KA)}')
            a.I(f'v_add_u32 {vr(V_KA)}, 1024, {vr(V_KA)}')
            a.I('s_waitcnt lgkmcnt(0)')
            a.I(f'v_mfma_f32_32x32x16_bf16 {vr(S, 16)}, {vr(V_K, 4)}, {vr(V_Q + 4 * t, 4)}, 0')
            for i in range(8):
                a.I(f'v_max3_f32 {vr(V_M)}, {vr(S + 2 * i)}, {vr(S + 2 * i + 1)}, {vr(V_M)}')
            a.I('s_sub_u32 s26, s26, 1')
            a.I('s_cmp_lg_u32 s26, 0')
            a.I(f's_cbranch_scc1 L_smax_{tag}_{t}')
            a.I(f'v_mov_b32 {vr(V_KA)}, {vr(V_M)}')
            a.I(f'v_permlane32_swap_b32 {vr(V_M)}, {vr(V_KA)}')
            a.I(f'v_max_f32 {vr(V_M)}, {vr(V_M)}, {vr(V_KA)}')
            for i in range(16):
                a.I(f'v_sub_f32 {vr(C + i)}, 0, {vr(V_M)}')
                a.I(f'v_mov_b32 {vr(V_O[t] + i)}, 0')
            a.I(f'v_mov_b32 {vr(V_KA)}, {vr(V_L16)}')
            a.I(f'v_mul_u32_u24 {vr(V_M)}, 15, {vr(V_VS)}')
            a.I(f'v_sub_u32 {vr(V_M)}, {vr(V_VA)}, {vr(V_M)}')
            a.I(f'v_lshrrev_b32 {vr(V_T + 2)}, 2, {vr(V_VS)}')
            a.I('s_mov_b32 s26, 64')
            a.label(f'L_ssum_{tag}_{t}')
            a.I(f'ds_read_b128 {vr(V_K, 4)}, {vr(V_KA)}')
            a.I(f'ds_read_b128 {vr(V_V, 4)}, {vr(V_M)}')
            a.I(f'ds_read_b128 {vr(V_V + 4, 4)}, {vr(V_M)} offset:512')
            a.I(f'v_add_u32 {vr(V_KA)}, 1024, {vr(V_KA)}')
            a.I(f'v_add_u32 {vr(V_M)}, {vr(V_T + 2)}, {vr(V_M)}')
            a.I('s_waitcnt lgkmcnt(0)')
            a.I(f'v_mfma_f32_32x32x16_bf16 {vr(S, 16)}, {vr(V_K, 4)}, {vr(V_Q + 4 * t, 4)}, {vr(C, 16)}')
            for i in range(16):
                a.I(f'v_exp_f32 {vr(S + i)}, {vr(S + i)}')
            for h in range(2):
                a.I(f'v_smfmac_f32_32x32x32_bf16 {vr(V_O[t], 16)}, {vr(V_V + 4 * h, 4)}, {vr(S + 8 * h, 8)}, '
                    f'{vr(V_IDX)}')
            a.I('s_sub_u32 s26, s26, 1')
            a.I('s_cmp_lg_u32 s26, 0')
            a.I(f's_cbranch_scc1 L_ssum_{tag}_{t}')
            a.I('s_nop 15')
        a.I(f's_branch L_fin_{tag}')

    return slow


def kernel_prep(a):
    end = 'L_prep_end'
    NW16, NW32, NX = 192, 118, 128
    a.I(f's_cmp_ge_u32 s2, {NW16 + NW32 + NX}')
    a.I(f's_cbranch_scc1 {end}')
    a.I(f's_load_dwordx2 {sr(S_WS, 2)}, s[0:1], 80')
    a.I('s_load_dwordx2 s[36:37], s[0:1], 0')
    a.I('s_load_dwordx4 s[40:43], s[0:1], 8')
    a.I('s_load_dwordx2 s[44:45], s[0:1], 32')
    a.I('s_load_dwordx2 s[46:47], s[0:1], 48')
    a.I('v_lshrrev_b32 v2, 6, v0')
    a.I('v_and_b32 v0, 63, v0')
    a.I(f'v_readfirstlane_b32 {sr(S_W)}, v2')
    a.I(f'v_lshlrev_b32 {vr(V_L16)}, 4, v0')
    srd(a, S_WS, 0x10000000)
    a.I(f's_mov_b32 {sr(S_AUX + 3)}, 0x20000')
    a.I('s_waitcnt lgkmcnt(0)')
    a.I(f's_cmp_ge_u32 s2, {NW16 + NW32}')
    a.I('s_cbranch_scc1 L_prep_x')
    a.I(f's_cmp_ge_u32 s2, {NW16}')
    a.I('s_cbranch_scc1 L_prep_w32')
    a.I('s_cmp_ge_u32 s2, 96')
    a.I('s_cbranch_scc1 L_prep_w1')
    a.M(f'''
        s_mov_b32 s16, s40
        s_mov_b32 s17, s41
        s_mov_b32 s18, {512 * 1536 * 2}
        s_mov_b32 s20, 3072
        s_mul_i32 s24, s2, 21846
        s_lshr_b32 s24, s24, 16
        s_mul_i32 s25, s24, 3
        s_sub_u32 s25, s2, s25
        s_lshl_b32 s21, s25, 9
        s_lshl_b32 s24, s24, 4
        s_add_u32 s21, s21, s24
        s_lshl_b32 s22, s2, 14
        s_add_u32 s22, s22, {WS_WQKV}
        s_lshl_b32 s23, s2, 6
        s_add_u32 s23, s23, {WS_CQ}
        s_branch L_prep_w16
    L_prep_w1:
        s_mov_b32 s16, s44
        s_mov_b32 s17, s45
        s_sub_u32 s24, s2, 96
        s_cmp_lt_u32 s24, 86
        s_cselect_b32 s18, {512 * 1376 * 2}, 0
        s_mov_b32 s20, 2752
        s_lshl_b32 s21, s24, 4
        s_lshl_b32 s22, s24, 14
        s_add_u32 s22, s22, {WS_W1}
        s_lshl_b32 s23, s24, 6
        s_add_u32 s23, s23, {WS_C1}
    L_prep_w16:
        v_lshrrev_b32 v2, 5, v0
        v_bfe_u32 v3, v0, 4, 1
        v_lshlrev_b32 v2, 4, v2
        v_lshl_add_u32 v2, v3, 2, v2
        s_lshl_b32 s24, {sr(S_W)}, 7
        v_add_u32 v2, s24, v2
        v_mul_lo_u32 v2, v2, s20
        v_and_b32 v3, 15, v0
        v_add_u32 v3, s21, v3
        v_lshl_add_u32 v2, v3, 1, v2
        s_lshl_b32 s24, {sr(S_W)}, 12
        s_add_u32 s22, s22, s24
        s_mov_b32 s26, 32
        s_branch L_prep_gather
    L_prep_w32:
        s_sub_u32 s24, s2, {NW16}
        s_lshl_b32 s24, s24, 2
        s_add_u32 s24, s24, {sr(S_W)}
        s_lshl_b32 s24, s24, 2
        s_cmp_ge_u32 s24, 512
        s_cbranch_scc1 L_prep_w2
        s_mov_b32 s16, s42
        s_mov_b32 s17, s43
        s_mov_b32 s18, {512 * 512 * 2}
        s_lshr_b32 s25, s24, 5
        s_and_b32 s27, s24, 31
        s_lshl_b32 s22, s24, 10
        s_add_u32 s22, s22, {WS_WO}
        s_branch L_prep_w32b
    L_prep_w2:
        s_mov_b32 s16, s46
        s_mov_b32 s17, s47
        s_mov_b32 s18, {1376 * 512 * 2}
        s_sub_u32 s24, s24, 512
        s_lshl_b32 s22, s24, 10
        s_add_u32 s22, s22, {WS_W2}
        s_mul_i32 s25, s24, 48771
        s_lshr_b32 s25, s25, 22
        s_mul_i32 s27, s25, 86
        s_sub_u32 s27, s24, s27
    L_prep_w32b:
        s_mov_b32 s20, 1024
        s_mov_b32 s23, 0
        v_lshrrev_b32 v2, 5, v0
        v_lshlrev_b32 v2, 12, v2
        v_and_b32 v3, 31, v0
        v_lshl_add_u32 v2, v3, 1, v2
        s_mov_b32 s26, 16
    L_prep_gather:
    ''')
    for e in range(8):
        a.I(f's_mul_i32 {sr(48 + e)}, s20, {(e & 3) + 8 * (e >> 2)}')
    for i in range(4):
        lab = f'L_prep_g{i}'
        a.I('s_cmp_eq_u32 s26, 32')
        a.I(f's_cbranch_scc1 {lab}a')
        a.I('s_lshl_b32 s28, s27, 14')
        a.I('s_lshl_b32 s29, s25, 6')
        a.I('s_add_u32 s28, s28, s29')
        a.I('s_add_u32 s27, s27, 1')
        a.I(f's_cmp_eq_u32 s18, {512 * 512 * 2}')
        a.I('s_cselect_b32 s29, 32, 86')
        a.I('s_cmp_eq_u32 s27, s29')
        a.I('s_cselect_b32 s27, 0, s27')
        a.I('s_addc_u32 s25, s25, 0')
        a.I(f's_branch {lab}b')
        a.label(f'{lab}a')
        a.I(f's_mul_i32 s28, s20, {32 * i}')
        a.label(f'{lab}b')
        a.I('v_add_u32 v4, s28, v2')
        for e in range(8):
            a.I(f'buffer_load_ushort {vr(8 + 8 * i + e)}, v4, {sr(S_AUX, 4)}, {sr(48 + e)} offen')
    a.I('v_mov_b32 v5, 0')
    a.I('v_mov_b32 v6, 0x3f803f80')
    for i in range(4):
        a.I(f's_waitcnt vmcnt({24 - 8 * i + i})')
        for d in range(4):
            a.I(f'v_lshl_or_b32 {vr(40 + 4 * i + d)}, {vr(8 + 8 * i + 2 * d + 1)}, 16, {vr(8 + 8 * i + 2 * d)}')
        a.I(f'buffer_store_dwordx4 {vr(40 + 4 * i, 4)}, {vr(V_L16)}, {sr(S_WS, 4)}, s22 offen offset:{1024 * i}')
        for d in range(4):
            a.I(f'v_dot2_f32_bf16 v5, {vr(40 + 4 * i + d)}, v6, v5')
    a.I('s_cmp_eq_u32 s23, 0')
    a.I(f's_cbranch_scc1 {end}')
    a.M(f'''
        v_and_b32 v2, 15, v0
        v_lshrrev_b32 v3, 4, v0
        v_lshlrev_b32 v4, 6, v2
        v_lshl_add_u32 v3, v3, 2, v4
        s_lshl_b32 s24, {sr(S_W)}, 4
        v_add_u32 v3, s24, v3
        ds_write_b32 v3, v5
        s_waitcnt lgkmcnt(0)
        s_barrier
        ds_read_b128 v[8:11], v4
        ds_read_b128 v[12:15], v4 offset:16
        ds_read_b128 v[16:19], v4 offset:32
        ds_read_b128 v[20:23], v4 offset:48
        s_waitcnt lgkmcnt(0)
    ''')
    for i in range(1, 16):
        a.I(f'v_add_f32 v8, v8, {vr(8 + i)}')
    a.I('v_lshlrev_b32 v2, 2, v2')
    a.I(f'buffer_store_dword v8, v2, {sr(S_WS, 4)}, s23 offen')
    a.I(f's_branch {end}')
    a.label('L_prep_x')
    a.M(f'''
        s_mov_b32 s16, s36
        s_mov_b32 s17, s37
        s_mov_b32 s18, {2048 * 512 * 2}
        s_sub_u32 s24, s2, {NW16 + NW32}
        v_and_b32 v2, 15, v0
        v_lshrrev_b32 v3, 5, v0
        v_bfe_u32 v4, v0, 4, 1
        v_lshlrev_b32 v5, 10, v2
        v_lshl_add_u32 v5, v3, 5, v5
        v_lshl_add_u32 v5, v4, 3, v5
        s_lshl_b32 s25, s24, 14
        s_lshl_b32 s26, {sr(S_W)}, 8
        s_add_u32 s26, s26, s25
    ''')
    for i in range(4):
        for k in range(2):
            a.I(f'buffer_load_dwordx2 {vr(8 + 4 * i + 2 * k, 2)}, v5, {sr(S_AUX, 4)}, s26 offen '
                f'offset:{64 * i + 16 * k}')
    a.M(f'''
        s_lshl_b32 s26, {sr(S_W)}, 12
        s_add_u32 s25, s25, s26
        s_add_u32 s25, s25, {LBASE + XIN}
        s_lshr_b32 s26, s24, 2
        s_lshl_b32 s26, s26, 13
        s_and_b32 s27, s24, 3
        s_lshl_b32 s27, s27, 7
        s_add_u32 s26, s26, s27
        s_lshl_b32 s27, {sr(S_W)}, 11
        s_add_u32 s26, s26, s27
        s_add_u32 s26, s26, {LBASE + STIN}
        v_lshlrev_b32 v2, 3, v2
        v_lshl_add_u32 v2, v3, 2, v2
        v_mov_b32 v6, 0x3f803f80
        s_waitcnt vmcnt(0)
    ''')
    for i in range(4):
        x = 8 + 4 * i
        a.I(f'buffer_store_dwordx4 {vr(x, 4)}, {vr(V_L16)}, {sr(S_WS, 4)}, s25 offen offset:{1024 * i}')
        s1, s2 = 24 + 2 * i, 25 + 2 * i
        for d in range(4):
            a.I(f'v_dot2_f32_bf16 {vr(s1)}, {vr(x + d)}, v6, {vr(s1) if d else 0}')
        for d in range(4):
            a.I(f'v_dot2_f32_bf16 {vr(s2)}, {vr(x + d)}, {vr(x + d)}, {vr(s2) if d else 0}')
        a.I(f'v_permlane32_swap_b32 {vr(s1)}, {vr(s2)}')
        a.I(f'v_add_f32 {vr(s1)}, {vr(s1)}, {vr(s2)}')
        a.I(f'v_mov_b32 {vr(s2)}, {vr(s1)}')
        a.I(f'v_permlane16_swap_b32 {vr(s1)}, {vr(s2)}')
        a.I(f'v_add_f32 {vr(s1)}, {vr(s1)}, {vr(s2)}')
        a.I(f'buffer_store_dword {vr(s1)}, v2, {sr(S_WS, 4)}, s26 offen offset:{512 * i}')
    a.label(end)
    a.I('s_endpgm')


def kd(name, vgpr, accum):
    return f'''.amdhsa_kernel {name}
  .amdhsa_next_free_vgpr {vgpr}
  .amdhsa_next_free_sgpr 96
  .amdhsa_accum_offset {accum}
  .amdhsa_group_segment_fixed_size 0
  .amdhsa_kernarg_size 88
  .amdhsa_user_sgpr_count 2
  .amdhsa_user_sgpr_kernarg_segment_ptr 1
  .amdhsa_system_sgpr_workgroup_id_x 1
  .amdhsa_float_denorm_mode_32 3
.end_amdhsa_kernel
'''


def build():
    kernels = []

    def add(name, grid, lds, vgpr, accum, fn):
        a = Asm()
        fn(a)
        kernels.append((name, grid, lds, vgpr, accum, a))

    add('prep_kernel', 438, 1024, 64, 64, kernel_prep)
    for l in range(2):
        def simple(tag, body, aux=None):
            def fn(a):
                prologue(a, 256, l, f'L_end_{tag}', aux)
                tail = body(a)
                a.label(f'L_end_{tag}')
                a.I('s_endpgm')
                if tail:
                    tail()
            add(f'{tag}_kernel', 256, LDS_TOTAL, 512, 256, fn)
        simple(f'qkv{l}', lambda a: stage_up(a, 'qkv', XIN, STIN))
        simple(f'att{l}', lambda a: stage_att(a, f'att{l}'))
        simple(f'proj{l}', lambda a: stage_down(a, 'proj', False))
        simple(f'up{l}', lambda a: stage_up(a, 'mlp', X1, ST1), (40, 1376 * 2))
        simple(f'down{l}', lambda a: stage_down(a, 'mlp2', l == 1), (56, 512 * 2))
    hdr = open('cdna_kernels/' + NAME + '.s.ref').read().split('; Override launch')[0]
    out = [hdr.rstrip('\n')]
    for name, grid, lds, *_ in kernels:
        out.append(f'; @launch kernel={name} grid=({grid},1,1) block=(256,1,1) lds={lds}')
    out.append('.amdgcn_target "amdgcn-amd-amdhsa--gfx950"')
    out.append('.text')
    for name, grid, lds, vgpr, accum, a in kernels:
        out.append(f'.globl {name}\n.p2align 8\n.type {name},@function\n{name}:')
        out.append(a.text())
    out.append('.section .rodata,"a"')
    for name, grid, lds, vgpr, accum, a in kernels:
        out.append('.p2align 6')
        out.append(kd(name, vgpr, accum))
    return '\n'.join(out)


if __name__ == '__main__':
    dst = sys.argv[1] if len(sys.argv) > 1 else 'cdna_kernels/' + NAME + '.s'
    open(dst, 'w').write(build())
    print('wrote', dst)
```
